```python
import torch

def _softmax(x, axis=-1):
    return torch.softmax(x, dim=axis)
def _gelu(x):
    return torch.nn.functional.gelu(x, approximate="tanh")
def _silu(x):
    return torch.nn.functional.silu(x)
def _sigmoid(x):
    return torch.sigmoid(x)
def _layernorm(x, axis=-1, eps=1e-5):
    m = x.mean(dim=axis, keepdim=True)
    v = x.var(dim=axis, keepdim=True, unbiased=False)
    return (x - m) / torch.sqrt(v + eps)
def _scatter_add(tgt, idx, src, axis=0):
    return tgt.clone().index_add_(axis, idx, src)
def _segment_sum(src, seg, n):
    out = torch.zeros((n,) + src.shape[1:], dtype=src.dtype)
    return out.index_add_(0, seg, src)
def _pad(x, pw):
    flat = tuple(v for pair in reversed(pw) for v in pair)
    return torch.nn.functional.pad(x, flat)

kernel_name = 'sequential_preLN__mha_block__glu_gated_geglu__prompt'

def setup_inputs():

    _w = (lambda a: (lambda t: t.to(torch.bfloat16) if t.is_floating_point() else t)(torch.as_tensor(a)))
    def _A_setup():
        B, S, D, H = 1, 2048, 576, 32
        return {
            "x": _w((lambda *s: torch.randn(*s, dtype=torch.bfloat16) * 0.05)(B, S, D)),
            "wqkv": _w((lambda *s: torch.randn(*s, dtype=torch.bfloat16) * 0.05)(D, 3 * D)),
            "wo": _w((lambda *s: torch.randn(*s, dtype=torch.bfloat16) * 0.05)(D, D)),
        }
    _A_in = _A_setup()

    def _B_setup():
        B, S, Dm, Df = 1, 2048, 576, 4608
        return {
            "x": _w((lambda *s: torch.randn(*s, dtype=torch.bfloat16) * 0.05)(B, S, Dm)),
            "w_gate": _w((lambda *s: torch.randn(*s, dtype=torch.bfloat16) * 0.8)(Dm, Df) * (Dm ** -0.5)),
            "w_up": _w((lambda *s: torch.randn(*s, dtype=torch.bfloat16) * 0.8)(Dm, Df) * (Dm ** -0.5)),
            "w_down": _w((lambda *s: torch.randn(*s, dtype=torch.bfloat16) * 0.8)(Df, Dm) * (Df ** -0.5)),
        }
    _B_in = _B_setup()

    return {
        "A_x": _A_in["x"],
        "A_wqkv": _A_in["wqkv"],
        "A_wo": _A_in["wo"],
        "B_x": _B_in["x"],
        "B_w_gate": _B_in["w_gate"],
        "B_w_up": _B_in["w_up"],
        "B_w_down": _B_in["w_down"],
    }

def reference(A_x, A_wqkv, A_wo, B_x, B_w_gate, B_w_up, B_w_down):
    def _A_ref(x, wqkv, wo):
        B, S, D = x.shape
        H = 32
        Dh = D // H
        qkv = (lambda x, *d: x.permute(*d))((x @ wqkv).reshape(B, S, 3, H, Dh), 2, 0, 3, 1, 4)
        q, k, v = qkv[0], qkv[1], qkv[2]
        scores = torch.einsum("bhqd,bhkd->bhqk", q, k) * (Dh ** -0.5)
        p = _softmax(scores, axis=-1)
        o = torch.einsum("bhqk,bhkd->bhqd", p, v)
        return (lambda x, *d: x.permute(*d))(o, 0, 2, 1, 3).reshape(B, S, D) @ wo

    def _B_ref(x, w_gate, w_up, w_down):
        g = torch.einsum("bsd,df->bsf", x, w_gate)
        u = torch.einsum("bsd,df->bsf", x, w_up)
        h = _gelu(g) * u
        return torch.einsum("bsf,fd->bsd", h, w_down)

    x = A_x
    h = x + _A_ref(_layernorm(x, axis=-1), A_wqkv, A_wo)
    h2 = h + _B_ref(_layernorm(h, axis=-1), B_w_gate, B_w_up, B_w_down)
    return h2
```

```python
import re

class Asm:
    def __init__(self):
        self.lines = []
        self.vm = []
        self.lg = []
        self.lgc = []
        self.lg_mode = "inorder"

    def I(self, s):
        for l in s.strip("\n").split("\n"):
            l = l.strip()
            if l:
                self.lines.append("    " + l)

    def L(self, name):
        self.lines.append(name + ":")

    def C(self, s):
        self.lines.append("    ; " + s)

    def raw(self, s):
        self.lines.append(s)

    def VM(self, s, tag=None):
        self.I(s)
        self.vm.append(tag)

    def DS(self, s, tag=None):
        self.I(s)
        self.lg.append(tag)
        self.lgc.append("tr" if "_tr_" in s.split()[0] else "n")

    @staticmethod
    def _need(q, tags):
        if not isinstance(tags, (list, set)):
            tags = [tags]
        idx = -1
        for i, t in enumerate(q):
            if t in tags:
                idx = i
        return idx

    def wait(self, vm=None, lg=None, force=False):
        parts = []
        if vm is not None:
            idx = len(self.vm) - 1 if vm == "all" else self._need(self.vm, vm)
            if idx >= 0 or (vm == "all" and force):
                n = len(self.vm) - 1 - idx
                assert n <= 63, n
                parts.append(f"vmcnt({n})")
                self.vm = self.vm[idx + 1:]
        if lg is not None:
            assert len(self.lg) == len(self.lgc)
            idx = len(self.lg) - 1 if lg == "all" else self._need(self.lg, lg)
            if idx >= 0 or (lg == "all" and force):
                n = len(self.lg) - 1 - idx
                tags = lg if isinstance(lg, (list, set)) else [lg]
                if self.lg_mode == "class" and lg != "all" and len(set(self.lgc)) > 1:
                    for cls in set(self.lgc):
                        need = [i for i, t in enumerate(self.lg) if t in tags and self.lgc[i] == cls]
                        if need:
                            n = min(n, sum(1 for i in range(need[-1] + 1, len(self.lg)) if self.lgc[i] == cls))
                if self.lg_mode == "zero":
                    n = 0
                assert n <= 15, n
                parts.append(f"lgkmcnt({n})")
                if n == 0:
                    self.lg = []; self.lgc = []
                else:
                    keep = [i for i, t in enumerate(self.lg) if i > idx or (t not in tags and False)]
                    self.lgc = [self.lgc[i] for i in keep]; self.lg = [self.lg[i] for i in keep]
        if parts:
            self.I("s_waitcnt " + " ".join(parts))

    def text(self):
        return "\n".join(self.lines) + "\n"


_REG = re.compile(r"\b([vas])(\d+)\b|\b([vas])\[(\d+):(\d+)\]")
TRANS = ("v_exp_f32", "v_log_f32", "v_rcp_f32", "v_rsq_f32", "v_sqrt_f32", "v_sin_f32", "v_cos_f32",
         "v_exp_f16", "v_rcp_f16")

def _regs(tok):
    out = []
    for m in _REG.finditer(tok):
        if m.group(1):
            out.append((m.group(1), int(m.group(2))))
        else:
            out += [(m.group(3), i) for i in range(int(m.group(4)), int(m.group(5)) + 1)]
    if re.search(r"\bvcc\b", tok):
        out.append(("s", "vcc"))
    if re.search(r"\bexec\b", tok):
        out.append(("s", "exec"))
    if re.search(r"\bm0\b", tok):
        out.append(("s", "m0"))
    return out

def parse(line):
    s = line.split(";")[0].strip()
    if not s or s.endswith(":") or s.startswith("."):
        return None
    sp = s.split(None, 1)
    op = sp[0]
    ops = [t.strip() for t in re.split(r",(?![^\[]*\])", sp[1])] if len(sp) > 1 else []
    d = dict(op=op, text=s, w=[], r=[], srcc=[], ab=[])
    base = re.sub(r"_(e32|e64|dpp|sdwa)$", "", op)
    d["base"] = base
    if op.startswith("v_mfma"):
        d["cls"] = "mfma"
        d["w"] = _regs(ops[0]); d["ab"] = _regs(ops[1]) + _regs(ops[2]); d["srcc"] = _regs(ops[3])
        d["r"] = d["ab"] + d["srcc"]
        d["passes"] = 8 if "32x32" in op else 4
    elif op.startswith("v_"):
        d["cls"] = "valu"
        nw = 1
        if base.startswith("v_cmp"):
            nw = 1
        if base in ("v_add_co_u32", "v_sub_co_u32", "v_addc_co_u32", "v_subb_co_u32", "v_subrev_co_u32", "v_mad_u64_u32"):
            nw = 2
        for t in ops[:nw]:
            d["w"] += _regs(t)
        for t in ops[nw:]:
            d["r"] += _regs(t)
        if base in ("v_fmac_f32", "v_dot2c_f32_bf16", "v_pk_fmac_f16"):
            d["r"] += d["w"]
        if base.startswith("v_permlane") or base == "v_swap_b32":
            d["w"] = _regs(ops[0]) + _regs(ops[1]); d["r"] = list(d["w"])
        if base.startswith("v_cmpx"):
            d["w"].append(("s", "exec"))
        if "UNUSED_PRESERVE" in s or "row_" in s or "quad_perm" in s:
            d["r"] += d["w"]
        if base == "v_cndmask_b32" and len(ops) == 3:
            d["r"].append(("s", "vcc"))
        d["dpp"] = ("row_" in s or "quad_perm" in s or "wave_" in s)
    elif op.startswith(("buffer_", "global_", "ds_", "flat_")):
        d["cls"] = "mem"
        allr = [(_regs(t)) for t in ops]
        lds = bool(re.search(r"\blds\b", s))
        is_store = "store" in op or op.startswith("ds_write") or ("atomic" in op)
        if op.startswith("ds_read") or op.startswith("ds_bpermute") or op.startswith("ds_permute") or \
           (("load" in op) and not lds):
            d["w"] = allr[0]
            for x in allr[1:]:
                d["r"] += x
        else:
            for x in allr:
                d["r"] += x
        if lds:
            d["r"].append(("s", "m0"))
        d["lds_dma"] = lds
        d["wide_store"] = is_store and ("x4" in op or "x3" in op) and not op.startswith("ds_")
        if d["wide_store"]:
            big = max(allr, key=lambda x: len([r for r in x if r[0] in "va"]))
            d["sdata"] = [r for r in big if r[0] in "va"]
    elif op.startswith("s_"):
        d["cls"] = "salu"
        if op in ("s_waitcnt", "s_nop", "s_barrier", "s_endpgm", "s_branch", "s_setprio", "s_sleep") or op.startswith("s_cbranch"):
            pass
        elif op.startswith("s_cmp"):
            for t in ops:
                d["r"] += _regs(t)
        else:
            d["w"] = _regs(ops[0]) if ops else []
            for t in ops[1:]:
                d["r"] += _regs(t)
            if "saveexec" in op:
                d["w"].append(("s", "exec"))
        d["nop"] = int(ops[0]) + 1 if op == "s_nop" else 1
    else:
        raise ValueError("cannot parse: " + s)
    return d

def check(lines, name=""):
    ins = [(i, parse(l)) for i, l in enumerate(lines)]
    ins = [(i, d) for i, d in ins if d]
    pos = []
    p = 0
    for _, d in ins:
        pos.append(p)
        p += d.get("nop", 1)
    errs = []
    WIN = 24
    for j, (lj, c) in enumerate(ins):
        k = j - 1
        while k >= 0 and pos[j] - pos[k] - ins[k][1].get("nop", 1) < WIN:
            a = ins[k][1]
            dist = pos[j] - pos[k] - a.get("nop", 1)
            aw = set(a["w"]); cr = set(c["r"]); cw = set(c["w"])
            def need(n, why):
                if dist < n:
                    errs.append(f"{name}: line {lj+1}: '{c['text']}' needs {n} states after '{a['text']}' (has {dist}) [{why}]")
            if a["cls"] == "valu" and c["cls"] == "mfma" and aw & cr:
                need(2, "valu->mfma")
            if a["cls"] == "mfma":
                n = a["passes"]
                if c["cls"] == "mfma":
                    if aw & set(c["ab"]):
                        need(n + 4, "mfma D -> mfma A/B")
                    if aw & set(c["srcc"]) and not (set(c["srcc"]) == aw and c["passes"] == n):
                        need(n + 2, "mfma D -> mfma C partial")
                elif c["cls"] in ("valu", "mem") and (aw & (cr | cw)):
                    need(n + 4, "mfma D -> valu/mem")
                if c["cls"] == "valu" and set(a["srcc"]) & cw:
                    need(n - 1, "mfma C WAR")
            if a["cls"] == "valu":
                if a["base"] in TRANS and c["cls"] == "valu" and c["base"] not in TRANS and aw & cr:
                    need(1, "trans->valu")
                if c["cls"] == "valu" and c["base"].startswith("v_permlane") and aw & cr:
                    need(2, "valu->permlane")
                if c["cls"] == "valu" and c.get("dpp") and {r for r in aw if r[0] == "v"} & cr:
                    need(2, "valu->dpp")
                if c["cls"] == "valu" and c["base"] in ("v_readfirstlane_b32", "v_readlane_b32") and {r for r in aw if r[0] == "v"} & cr:
                    need(1, "valu->readlane")
                sw = {r for r in aw if r[0] == "s"}
                if sw:
                    if c["cls"] == "mem" and sw & cr:
                        need(5, "valu sgpr->vmem")
                    if c["cls"] == "valu" and sw & cr:
                        need(2, "valu sgpr->valu")
                    if ("s", "exec") in sw and c["cls"] == "mfma":
                        need(4, "valu exec->mfma")
            if a["cls"] == "salu" and ("s", "m0") in aw and c["cls"] == "mem" and c.get("lds_dma"):
                need(1, "m0->lds dma")
            if a["cls"] == "mem" and a.get("wide_store") and c["cls"] == "valu" and set(a["sdata"]) & cw:
                need(2, "store data WAR")
            if a["cls"] == "mem" and a.get("wide_store") and c["cls"] in ("mem", "mfma") and set(a["sdata"]) & cw:
                need(1, "store data WAR")
            k -= 1
    return errs
```

```python
T, D, H, DH, F = 2048, 576, 32, 18, 4608
QM   = 0
QR   = 2097152
KV   = 2359296
KVH  = 151552
KVV  = 73728
OF   = 7208960
HF   = 9568256
ST   = 11927552
WOP  = 12222464
WGU  = 12886016
WDP  = 23502848
CSP  = 28811264
CS2  = 28958720
PART = 29360128
WS_END = PART + 8 * 64 * 36 * 1024
WS_BYTES = 268435456

ARG = dict(x=0, wqkv=8, wo=16, bx=24, wg=32, wu=40, wd=48, out=56, dbg=64, ws=72)
QSCALE = 1.4426950408889634 / (18 ** 0.5)

import struct
def f32(x):
    return "0x%08x" % struct.unpack("<I", struct.pack("<f", x))[0]

def kernel_head(name):
    return f""".text
.globl {name}
.p2align 8
.type {name},@function
{name}:
"""

def kernel_desc(name, vgpr, accum, sgpr=102):
    return f""".section .rodata,"a"
.p2align 6
.amdhsa_kernel {name}
  .amdhsa_next_free_vgpr {vgpr}
  .amdhsa_next_free_sgpr {sgpr}
  .amdhsa_accum_offset {accum}
  .amdhsa_group_segment_fixed_size 0
  .amdhsa_kernarg_size 80
  .amdhsa_user_sgpr_count 2
  .amdhsa_user_sgpr_kernarg_segment_ptr 1
  .amdhsa_system_sgpr_workgroup_id_x 1
  .amdhsa_float_denorm_mode_32 3
.end_amdhsa_kernel
"""

def srd(a, s, ptr, nbytes):
    a.I(f"""s_mov_b32 s{s}, s{ptr}
    s_and_b32 s{s+1}, s{ptr+1}, 0xffff
    s_mov_b32 s{s+2}, {nbytes}
    s_mov_b32 s{s+3}, 0x20000""")
```

```python
from asmlib import Asm
from common import *

NAME = "k1_qkv_kernel"
LDS = 159744
RING = 0
SLOT = 7168
XB = 86016

def gen():
    a = Asm()
    sX, sW, sWS = 12, 16, 20
    sG, sRB, sWV = 24, 25, 26
    vLane, vT0, vT1, vT2, vT3 = 1, 13, 14, 15, 16
    vW0, vW1 = 2, 3
    vX0, vX1 = 4, 8
    vDma = 12
    vXoff = 17
    vPf = 20
    X = 32
    Fp = 68
    WF = 140
    XF = 68
    ACC = 100
    a.I(f"""s_cmp_ge_u32 s2, 256
    s_cbranch_scc1 K1_END
    s_load_dwordx4 s[4:7], s[0:1], {ARG['x']}
    s_load_dwordx2 s[8:9], s[0:1], {ARG['ws']}
    v_and_b32 v{vLane}, 63, v0
    v_lshrrev_b32 v{vT0}, 6, v0
    s_and_b32 s{sG}, s2, 7
    s_lshr_b32 s{sRB}, s2, 3
    v_readfirstlane_b32 s{sWV}, v{vT0}""")
    a.I(f"""v_lshrrev_b32 v{vT1}, 3, v0
    v_mul_u32_u24 v{vXoff}, 1152, v{vT1}
    v_and_b32 v{vT2}, 7, v0
    v_lshl_add_u32 v{vXoff}, v{vT2}, 4, v{vXoff}""")
    a.I(f"""v_min_u32 v{vT3}, 485, v0
    v_mul_u32_u24 v{vT1}, 2428, v{vT3}
    v_lshrrev_b32 v{vT1}, 16, v{vT1}
    v_mul_u32_u24 v{vT2}, 27, v{vT1}
    v_sub_u32 v{vT2}, v{vT3}, v{vT2}
    v_mul_u32_u24 v{vT3}, 57, v{vT2}
    v_lshrrev_b32 v{vT3}, 9, v{vT3}
    v_mul_u32_u24 v{vPf}, 3456, v{vT1}
    v_mul_u32_u24 v{vPf+1}, 1008, v{vT3}
    v_add_u32 v{vPf}, v{vPf}, v{vPf+1}
    v_lshl_add_u32 v{vPf}, v{vT2}, 4, v{vPf}""")
    a.I(f"""v_mul_u32_u24 v{vT1}, 2341, v0
    v_lshrrev_b32 v{vT1}, 16, v{vT1}
    v_mul_u32_u24 v{vT2}, 28, v{vT1}
    v_sub_u32 v{vT2}, v0, v{vT2}
    v_min_u32 v{vT2}, 26, v{vT2}
    v_mul_u32_u24 v{vT3}, 57, v{vT2}
    v_lshrrev_b32 v{vT3}, 9, v{vT3}
    v_mul_u32_u24 v{vDma}, 3456, v{vT1}
    v_mul_u32_u24 v{vT3}, 1008, v{vT3}
    v_add_u32 v{vDma}, v{vDma}, v{vT3}
    v_lshl_add_u32 v{vDma}, v{vT2}, 4, v{vDma}""")
    a.I("s_waitcnt lgkmcnt(0)")
    srd(a, sX, 4, T * D * 2)
    srd(a, sW, 6, D * 3 * D * 2)
    srd(a, sWS, 8, WS_END)
    a.I(f"""s_mul_i32 s27, s{sRB}, {64*1152}
    s_mul_i32 s28, s{sG}, 144
    s_mul_i32 s29, s{sRB}, {18*3456}
    s_add_u32 s29, s29, s28""")
    for u in range(9):
        a.VM(f"buffer_load_dwordx4 v[{X+4*u}:{X+4*u+3}], v{vXoff}, s[{sX}:{sX+3}], s27 offen offset:{128*u}", "x")
    a.VM(f"buffer_load_dwordx4 v[{vPf}:{vPf+3}], v{vPf}, s[{sW}:{sW+3}], s29 offen", "pf")
    a.I(f"""s_cmp_eq_u32 s{sWV}, 7
    s_cbranch_scc1 K1_NODMA0
    s_lshl_b32 s30, s{sWV}, 10
    s_mov_b32 s31, s28""")
    def dma(s):
        slot = s % 12
        a.I(f"s_add_u32 m0, s30, {RING + slot * SLOT}")
        a.I("s_nop 0")
        a.VM(f"buffer_load_dwordx4 v{vDma}, s[{sW}:{sW+3}], s31 offen lds", ("g", s // 4))
        a.I(f"s_add_u32 s31, s31, {16*3456}")
    vm_save = list(a.vm)
    for s in range(12):
        dma(s)
    vm_with = list(a.vm)
    a.L("K1_NODMA0")
    a.I(f"""v_and_b32 v{vT0}, 31, v{vLane}
    v_lshrrev_b32 v{vT1}, 5, v{vLane}""")
    for e in range(4):
        a.I(f"""v_or_b32 v{vT2}, {2*e}, v{vT1}
        v_xor_b32 v{vT2}, v{vT0}, v{vT2}
        v_lshlrev_b32 v{vT2}, 4, v{vT2}
        v_lshl_add_u32 v{vT2}, v{vT1}, 9, v{vT2}
        v_add_u32 v{vX0+e}, {XB + e*1024}, v{vT2}
        v_add_u32 v{vX1+e}, {XB + e*1024 + 36864}, v{vT2}""")
    a.I(f"""v_lshrrev_b32 v{vT0}, 5, v{vLane}
    v_bfe_u32 v{vT1}, v{vLane}, 2, 2
    v_lshl_add_u32 v{vT0}, v{vT0}, 3, v{vT1}
    v_mul_u32_u24 v{vW0}, 448, v{vT0}
    v_bfe_u32 v{vT0}, v{vLane}, 4, 1
    v_and_b32 v{vT1}, 3, v{vLane}
    s_cmp_eq_u32 s{sWV}, 6
    s_cbranch_scc1 K1_REMADDR""")
    a.I(f"""s_lshr_b32 s33, s{sWV}, 1
    s_mul_i32 s33, s33, 144
    s_and_b32 s34, s{sWV}, 1
    s_mul_i32 s34, s34, 72
    s_add_u32 s33, s33, s34
    v_mul_u32_u24 v{vT0}, 5, v{vT0}
    v_and_b32 v{vT2}, 1, v{vT1}
    v_lshl_add_u32 v{vT0}, v{vT2}, 1, v{vT0}
    v_lshrrev_b32 v{vT1}, 1, v{vT1}
    v_add_u32 v{vT0}, v{vT0}, v{vT1}
    v_lshl_add_u32 v{vT0}, v{vT0}, 3, s33
    s_branch K1_ADDRDONE""")
    a.L("K1_REMADDR")
    a.I(f"""v_lshl_add_u32 v{vT0}, v{vT0}, 2, v{vT1}
    v_cmp_gt_u32 vcc, 6, v{vT0}
    s_nop 1
    v_cndmask_b32 v{vT0}, 0, v{vT0}, vcc
    v_lshrrev_b32 v{vT1}, 1, v{vT0}
    v_mul_u32_u24 v{vT1}, 144, v{vT1}
    v_and_b32 v{vT0}, 1, v{vT0}
    v_mul_u32_u24 v{vT0}, 72, v{vT0}
    v_add3_u32 v{vT0}, v{vT0}, v{vT1}, 32""")
    a.L("K1_ADDRDONE")
    a.I(f"""v_add_u32 v{vW0}, v{vW0}, v{vT0}
    v_add_u32 v{vW1}, {8*SLOT}, v{vW0}""")
    a.I(f"""s_cmp_eq_u32 s{sWV}, 7
    s_cbranch_scc1 K1_WX7
    s_waitcnt vmcnt(13)
    s_branch K1_WXD""")
    a.L("K1_WX7")
    a.I("s_waitcnt vmcnt(1)")
    a.L("K1_WXD")
    for i in range(36):
        a.I(f"v_lshlrev_b32 v{Fp+2*i}, 16, v{X+i}")
        a.I(f"v_and_b32 v{Fp+2*i+1}, 0xffff0000, v{X+i}")
    S0 = 24
    for j in range(4):
        a.I(f"v_pk_add_f32 v[{S0+2*j}:{S0+2*j+1}], v[{Fp+2*j}:{Fp+2*j+1}], v[{Fp+2*j+8}:{Fp+2*j+9}]")
    for i in range(8, 36):
        j = i % 4
        a.I(f"v_pk_add_f32 v[{S0+2*j}:{S0+2*j+1}], v[{S0+2*j}:{S0+2*j+1}], v[{Fp+2*i}:{Fp+2*i+1}]")
    def reduce8():
        a.I(f"""v_pk_add_f32 v[{S0}:{S0+1}], v[{S0}:{S0+1}], v[{S0+2}:{S0+3}]
        v_pk_add_f32 v[{S0+4}:{S0+5}], v[{S0+4}:{S0+5}], v[{S0+6}:{S0+7}]
        s_nop 0
        v_pk_add_f32 v[{S0}:{S0+1}], v[{S0}:{S0+1}], v[{S0+4}:{S0+5}]
        s_nop 0
        v_add_f32 v{S0}, v{S0}, v{S0+1}
        s_nop 1
        v_add_f32_dpp v{S0}, v{S0}, v{S0} quad_perm:[1,0,3,2] row_mask:0xf bank_mask:0xf
        s_nop 1
        v_add_f32_dpp v{S0}, v{S0}, v{S0} quad_perm:[2,3,0,1] row_mask:0xf bank_mask:0xf
        s_nop 1
        v_add_f32_dpp v{S0}, v{S0}, v{S0} row_half_mirror row_mask:0xf bank_mask:0xf""")
    reduce8()
    a.I(f"""v_mul_f32 v{S0}, {f32(-1.0/576)}, v{S0}
    s_nop 0
    v_mov_b32 v{S0+1}, v{S0}""")
    NM = 18
    a.I(f"v_mov_b32 v{NM}, v{S0}\nv_mov_b32 v{NM+1}, v{S0}")
    for i in range(36):
        a.I(f"v_pk_add_f32 v[{Fp+2*i}:{Fp+2*i+1}], v[{Fp+2*i}:{Fp+2*i+1}], v[{NM}:{NM+1}]")
    for j in range(4):
        a.I(f"v_pk_mul_f32 v[{S0+2*j}:{S0+2*j+1}], v[{Fp+2*j}:{Fp+2*j+1}], v[{Fp+2*j}:{Fp+2*j+1}]")
    for i in range(4, 36):
        j = i % 4
        a.I(f"v_pk_fma_f32 v[{S0+2*j}:{S0+2*j+1}], v[{Fp+2*i}:{Fp+2*i+1}], v[{Fp+2*i}:{Fp+2*i+1}], v[{S0+2*j}:{S0+2*j+1}]")
    reduce8()
    a.I(f"""v_mov_b32 v{NM}, {f32(1e-5)}
    v_fmac_f32 v{NM}, {f32(1.0/576)}, v{S0}
    v_rsq_f32 v{NM}, v{NM}
    s_nop 0
    v_mov_b32 v{NM+1}, v{NM}""")
    for i in range(36):
        a.I(f"v_pk_mul_f32 v[{Fp+2*i}:{Fp+2*i+1}], v[{Fp+2*i}:{Fp+2*i+1}], v[{NM}:{NM+1}]")
    for i in range(36):
        a.I(f"v_cvt_pk_bf16_f32 v{X+i}, v{Fp+2*i}, v{Fp+2*i+1}")
    a.I(f"""v_and_b32 v{vT0}, 7, v{vLane}
    v_lshrrev_b32 v{vT1}, 3, v{vLane}
    v_xor_b32 v{vT1}, v{vT1}, v{vT0}
    v_lshlrev_b32 v{vT1}, 4, v{vT1}
    v_lshrrev_b32 v{vT2}, 1, v{vT0}
    v_lshl_add_u32 v{vT1}, v{vT2}, 10, v{vT1}
    v_and_b32 v{vT0}, 1, v{vT0}
    v_lshl_add_u32 v{vT1}, v{vT0}, 9, v{vT1}
    s_and_b32 s33, s{sWV}, 3
    s_lshl_b32 s33, s33, 7
    s_lshr_b32 s34, s{sWV}, 2
    s_mul_i32 s34, s34, 36864
    s_add_u32 s33, s33, s34
    s_add_u32 s33, s33, {XB}
    v_add_u32 v{vT1}, s33, v{vT1}""")
    for u in range(9):
        a.DS(f"ds_write_b128 v{vT1}, v[{X+4*u}:{X+4*u+3}] offset:{4096*u}", "xw")
    a.wait(lg="all")
    a.I(f"""s_cmp_eq_u32 s{sWV}, 7
    s_cbranch_scc1 K1_WAVE7
    s_lshr_b32 s33, s{sWV}, 1
    s_cmp_eq_u32 s33, 2
    s_cbranch_scc1 K1_VLOOP""")

    def mainloop(tag, swapped):
        a.vm = [("g", s // 4) for s in range(12)]
        a.lg = []; a.lgc = []
        for g in range(9):
            a.wait(vm=("g", g))
            a.I("s_barrier")
            if g >= 1 and g + 2 <= 8:
                for s in range(4 * (g + 2), 4 * (g + 2) + 4):
                    dma(s)
            def reads(k):
                s = 4 * g + k
                slot = s % 12
                base, off = (vW0, slot * SLOT) if slot < 8 else (vW1, (slot - 8) * SLOT)
                a.DS(f"ds_read_b64_tr_b16 v[{WF+4*k}:{WF+4*k+1}], v{base} offset:{off}", ("r", k))
                a.DS(f"ds_read_b64_tr_b16 v[{WF+4*k+2}:{WF+4*k+3}], v{base} offset:{off+1792}", ("r", k))
                for t in range(2):
                    vb = (vX0, vX1)[t] + (s & 3)
                    a.DS(f"ds_read_b128 v[{XF+8*k+4*t}:{XF+8*k+4*t+3}], v{vb} offset:{(s>>2)*4096}", ("r", k))
            def mfmas(k):
                s = 4 * g + k
                for t in range(2):
                    c = "0" if s == 0 else f"v[{ACC+16*t}:{ACC+16*t+15}]"
                    w = f"v[{WF+4*k}:{WF+4*k+3}]"; x = f"v[{XF+8*k+4*t}:{XF+8*k+4*t+3}]"
                    A, B = (x, w) if swapped else (w, x)
                    a.I(f"v_mfma_f32_32x32x16_bf16 v[{ACC+16*t}:{ACC+16*t+15}], {A}, {B}, {c}")
            reads(0); reads(1); reads(2)
            a.wait(lg=("r", 0)); mfmas(0)
            reads(3)
            for k in (1, 2, 3):
                a.wait(lg=("r", k)); mfmas(k)
        a.I("s_nop 15")

    mainloop("a", False)
    PK = 140
    a.I(f"""s_cmp_eq_u32 s{sWV}, 6
    s_cbranch_scc1 K1_EPI_REM
    s_and_b32 s33, s{sWV}, 1
    s_lshl_b32 s33, s33, 1
    s_lshl_b32 s34, s{sG}, 2
    s_add_u32 s33, s33, s34
    v_lshlrev_b32 v{vT0}, 4, v{vLane}
    s_cmp_ge_u32 s{sWV}, 2
    s_cbranch_scc1 K1_EPI_K""")
    a.I(f"""s_lshl_b32 s34, s33, 6
    s_lshl_b32 s35, s{sRB}, 1
    s_add_u32 s34, s34, s35
    s_lshl_b32 s34, s34, 10
    s_add_u32 s34, s34, {QM}
    s_add_u32 s35, s34, 65536
    s_mov_b32 s36, {f32(QSCALE)}""")
    for t in range(2):
        for i in range(16):
            a.I(f"v_mul_f32 v{ACC+16*t+i}, s36, v{ACC+16*t+i}")
        for i in range(8):
            a.I(f"v_cvt_pk_bf16_f32 v{PK+8*t+i}, v{ACC+16*t+2*i}, v{ACC+16*t+2*i+1}")
        a.I(f"buffer_store_dwordx4 v[{PK+8*t}:{PK+8*t+3}], v{vT0}, s[{sWS}:{sWS+3}], s34 offen offset:{1024*t} sc1")
        a.I(f"buffer_store_dwordx4 v[{PK+8*t+4}:{PK+8*t+7}], v{vT0}, s[{sWS}:{sWS+3}], s35 offen offset:{1024*t} sc1")
    a.I("s_endpgm")
    a.L("K1_EPI_K")
    a.I(f"""s_mul_i32 s34, s33, {KVH}
    s_mul_i32 s35, s{sRB}, {2*1152}
    s_add_u32 s34, s34, s35
    s_add_u32 s34, s34, {KV}
    s_add_u32 s35, s34, {KVH}""")
    for t in range(2):
        for i in range(8):
            a.I(f"v_cvt_pk_bf16_f32 v{PK+8*t+i}, v{ACC+16*t+2*i}, v{ACC+16*t+2*i+1}")
        a.I(f"buffer_store_dwordx4 v[{PK+8*t}:{PK+8*t+3}], v{vT0}, s[{sWS}:{sWS+3}], s34 offen offset:{1152*t} sc1")
        a.I(f"buffer_store_dwordx4 v[{PK+8*t+4}:{PK+8*t+7}], v{vT0}, s[{sWS}:{sWS+3}], s35 offen offset:{1152*t} sc1")
    a.I("s_endpgm")
    a.L("K1_EPI_REM")
    a.I(f"""v_and_b32 v{vT0}, 31, v{vLane}
    v_lshrrev_b32 v{vT1}, 5, v{vLane}
    s_lshl_b32 s33, s{sG}, 2
    v_lshl_add_u32 v{vT1}, v{vT1}, 1, s33
    s_mov_b32 s36, {f32(QSCALE)}
    s_mov_b32 s37, {KVH}
    v_mul_lo_u32 v{vT2}, v{vT1}, s37
    v_lshlrev_b32 v18, 13, v{vT1}
    v_lshl_add_u32 v18, v{vT0}, 2, v18
    v_lshl_add_u32 v19, v{vT0}, 2, v{vT2}
    v_lshrrev_b32 v20, 4, v{vT0}
    v_mul_u32_u24 v20, 608, v20
    v_bfe_u32 v21, v{vT0}, 2, 1
    v_mul_u32_u24 v21, 304, v21
    v_add3_u32 v20, v20, v21, v{vT2}
    v_and_b32 v21, 3, v{vT0}
    v_lshl_add_u32 v20, v21, 1, v20
    v_bfe_u32 v21, v{vT0}, 3, 1
    v_lshl_add_u32 v20, v21, 3, v20
    s_lshl_b32 s33, s{sRB}, 8
    s_add_u32 s33, s33, {QR}
    s_add_u32 s34, s33, 8192
    s_mul_i32 s35, s{sRB}, {2*1152}
    s_add_u32 s35, s35, {KV + 1024}
    s_add_u32 s38, s35, {KVH}
    s_mul_i32 s39, s{sRB}, {4*608}
    s_add_u32 s39, s39, {KV + KVV + 256}
    s_add_u32 s40, s39, {KVH}""")
    for t in range(2):
        A = ACC + 16 * t
        for i in range(4):
            a.I(f"v_mul_f32 v{A+i}, s36, v{A+i}")
        for i in range(6):
            a.I(f"v_cvt_pk_bf16_f32 v{PK+8*t+i}, v{A+2*i}, v{A+2*i+1}")
        P = PK + 8 * t
        a.I(f"""buffer_store_dword v{P}, v18, s[{sWS}:{sWS+3}], s33 offen offset:{128*t}
        buffer_store_dword v{P+1}, v18, s[{sWS}:{sWS+3}], s34 offen offset:{128*t}
        buffer_store_dword v{P+2}, v19, s[{sWS}:{sWS+3}], s35 offen offset:{1152*t}
        buffer_store_dword v{P+3}, v19, s[{sWS}:{sWS+3}], s38 offen offset:{1152*t}
        buffer_store_short v{P+4}, v20, s[{sWS}:{sWS+3}], s39 offen offset:{1216*t}
        buffer_store_short_d16_hi v{P+4}, v20, s[{sWS}:{sWS+3}], s39 offen offset:{1216*t+16}
        buffer_store_short v{P+5}, v20, s[{sWS}:{sWS+3}], s40 offen offset:{1216*t}
        buffer_store_short_d16_hi v{P+5}, v20, s[{sWS}:{sWS+3}], s40 offen offset:{1216*t+16}""")
    a.I("s_endpgm")
    a.L("K1_VLOOP")
    mainloop("v", True)
    a.I(f"""v_bfe_u32 v{vT0}, v{vLane}, 4, 1
    s_mov_b32 s37, {KVH}
    v_mul_lo_u32 v{vT0}, v{vT0}, s37
    v_and_b32 v{vT1}, 15, v{vLane}
    v_lshl_add_u32 v{vT0}, v{vT1}, 4, v{vT0}
    v_lshrrev_b32 v{vT1}, 5, v{vLane}
    v_mul_u32_u24 v{vT1}, 304, v{vT1}
    v_add_u32 v{vT0}, v{vT0}, v{vT1}
    s_and_b32 s33, s{sWV}, 1
    s_lshl_b32 s33, s33, 1
    s_lshl_b32 s34, s{sG}, 2
    s_add_u32 s33, s33, s34
    s_mul_i32 s34, s33, {KVH}
    s_mul_i32 s35, s{sRB}, {4*608}
    s_add_u32 s34, s34, s35
    s_add_u32 s34, s34, {KV + KVV}""")
    for t in range(2):
        for i in range(8):
            a.I(f"v_cvt_pk_bf16_f32 v{PK+8*t+i}, v{ACC+16*t+2*i}, v{ACC+16*t+2*i+1}")
        a.I(f"buffer_store_dwordx4 v[{PK+8*t}:{PK+8*t+3}], v{vT0}, s[{sWS}:{sWS+3}], s34 offen offset:{1216*t} sc1")
        a.I(f"buffer_store_dwordx4 v[{PK+8*t+4}:{PK+8*t+7}], v{vT0}, s[{sWS}:{sWS+3}], s34 offen offset:{1216*t+608} sc1")
    a.I("s_endpgm")
    a.L("K1_WAVE7")
    a.I(f"""v_lshrrev_b32 v{vT0}, 3, v{vLane}
    s_mov_b32 s37, {KVH}
    v_mul_lo_u32 v{vT0}, v{vT0}, s37
    v_bfe_u32 v{vT1}, v{vLane}, 1, 2
    v_mul_u32_u24 v{vT1}, 608, v{vT1}
    v_and_b32 v{vT2}, 1, v{vLane}
    v_mul_u32_u24 v{vT2}, 304, v{vT2}
    v_add3_u32 v{vT0}, v{vT0}, v{vT1}, v{vT2}
    s_lshl_b32 s33, s{sG}, 2
    s_mul_i32 s34, s33, {KVH}
    s_mul_i32 s35, s{sRB}, {4*608}
    s_add_u32 s34, s34, s35
    s_add_u32 s34, s34, {KV + KVV + 288}
    v_mov_b32 v24, 0x3f803f80
    v_mov_b32 v25, 0x3f803f80
    v_mov_b32 v26, 0x3f803f80
    v_mov_b32 v27, 0x3f803f80
    v_cmp_gt_u32 vcc, 32, v{vLane}
    s_and_saveexec_b64 s[40:41], vcc
    buffer_store_dwordx4 v[24:27], v{vT0}, s[{sWS}:{sWS+3}], s34 offen sc1
    s_mov_b64 exec, s[40:41]""")
    for g in range(9):
        a.I("s_barrier")
    a.L("K1_END")
    a.I("s_endpgm")
    return a
GRID, BLOCK, VGPR, ACCUM = 256, 512, 160, 160
```

```python
import sys, importlib
import asmlib
from common import *
import k1
KERNELS = [("k1", 256, 512)]
def build(names, path):
    mods = [importlib.import_module(n) for n in names]
    head = open("sequential_preLN__mha_block__glu_gated_geglu__prompt.s.ref").read().split("; Override launch")[0]
    out = head
    for m in mods:
        out += f"; @launch kernel={m.NAME} grid=({m.GRID},1,1) block=({m.BLOCK},1,1) lds={m.LDS}\n"
    out += '.amdgcn_target "amdgcn-amd-amdhsa--gfx950"\n'
    nerr = 0
    for m in mods:
        a = m.gen()
        errs = asmlib.check(a.lines, m.NAME)
        for e in errs: print("HAZARD", e)
        nerr += len(errs)
        out += kernel_head(m.NAME) + a.text()
    for m in mods:
        out += kernel_desc(m.NAME, m.VGPR, m.ACCUM)
    open(path, "w").write(out)
    return nerr
if __name__ == "__main__":
    names = sys.argv[2:]
    n = build(names, sys.argv[1])
    print("hazards:", n)
```

```python
import re, sys
src = open(sys.argv[1]).read()
names = re.findall(r"; @launch kernel=(\w+) grid=\((\d+)", src)
COPY = """    s_waitcnt vmcnt(0)
    s_mov_b64 exec, 0xffff
    v_mbcnt_lo_u32_b32 v5, -1, 0
    v_lshlrev_b32 v5, 2, v5
    global_load_dword v6, v5, s[90:91] sc1
    s_waitcnt vmcnt(0)
    global_store_dword v5, v6, s[98:99]
"""
for i, (n, g) in enumerate(names):
    src = src.replace(f"{n}:\n", f"{n}:\n    s_memrealtime s[96:97]\n    s_load_dwordx2 s[98:99], s[0:1], 64\n    s_waitcnt lgkmcnt(0)\n", 1)
    body_start = src.index(f"{n}:\n")
    nxt = src.find(".globl", body_start)
    if nxt < 0 or nxt > src.index(".section .rodata"): nxt = src.index(".section .rodata")
    body = src[body_start:nxt]
    k = [0]
    def fin(m):
        k[0] += 1
        lab = f"DS_{i}_{k[0]}"
        return f"""    s_waitcnt vmcnt(0) lgkmcnt(0)
    s_memrealtime s[94:95]
    s_load_dwordx2 s[90:91], s[0:1], 72
    s_waitcnt lgkmcnt(0)
    s_add_u32 s90, s90, {100<<20}
    s_addc_u32 s91, s91, 0
    v_lshrrev_b32 v1, 6, v0
    s_mov_b64 exec, 1
    v_readfirstlane_b32 s93, v1
    s_waitcnt lgkmcnt(0)
    s_cmp_lg_u32 s93, 0
    s_cbranch_scc1 {lab}_x
    v_mov_b32 v2, 0
    v_mov_b32 v3, s96
    v_mov_b32 v4, s94
    s_cmp_eq_u32 s2, 0
    s_cbranch_scc0 {lab}_b
    global_store_dword v2, v3, s[90:91] offset:{12*i} sc1
    global_store_dword v2, v4, s[90:91] offset:{12*i+4} sc1
{COPY if i == len(names) - 1 else ""}    s_branch {lab}_x
{lab}_b:
    s_cmp_eq_u32 s2, {int(g)-1}
    s_cbranch_scc0 {lab}_x
    global_store_dword v2, v4, s[90:91] offset:{12*i+8} sc1
{lab}_x:
    s_endpgm
"""
    body2 = re.sub(r"    s_endpgm\n", fin, body)
    src = src[:body_start] + body2 + src[nxt:]
open(sys.argv[2], "w").write(src)
```
